```python
import torch

def _softmax(x, axis=-1):
    return torch.softmax(x, dim=axis)
def _gelu(x):
    return torch.nn.functional.gelu(x, approximate="tanh")
def _silu(x):
    return torch.nn.functional.silu(x)
def _sigmoid(x):
    return torch.sigmoid(x)
def _layernorm(x, axis=-1, eps=1e-5):
    m = x.mean(dim=axis, keepdim=True)
    v = x.var(dim=axis, keepdim=True, unbiased=False)
    return (x - m) / torch.sqrt(v + eps)
def _scatter_add(tgt, idx, src, axis=0):
    return tgt.clone().index_add_(axis, idx, src)
def _segment_sum(src, seg, n):
    out = torch.zeros((n,) + src.shape[1:], dtype=src.dtype)
    return out.index_add_(0, seg, src)
def _pad(x, pw):
    flat = tuple(v for pair in reversed(pw) for v in pair)
    return torch.nn.functional.pad(x, flat)

kernel_name = 'standalone__mixer_token_mlp__prompt'

def setup_inputs():

    _w = (lambda a: (lambda t: t.to(torch.bfloat16) if t.is_floating_point() else t)(torch.as_tensor(a)))
    B, S, D, F = 1, 2048, 448, 1792
    return {
        "x": _w((lambda *s: torch.randn(*s, dtype=torch.bfloat16) * 0.05)(B, S, D)),
        "w1": _w((lambda *s: torch.randn(*s, dtype=torch.bfloat16) * 0.2)(S, F) * (S ** -0.5)),
        "b1": _w((lambda *s: torch.randn(*s, dtype=torch.bfloat16) * 3.2)(F) * 0.02),
        "w2": _w((lambda *s: torch.randn(*s, dtype=torch.bfloat16) * 0.05)(F, S) * (F ** -0.5)),
        "b2": _w((lambda *s: torch.randn(*s, dtype=torch.bfloat16) * 0.1)(S) * 0.02),
    }

def reference(x, w1, b1, w2, b2):
    B, S, D = x.shape
    h = _layernorm(x, axis=-1)
    u = torch.einsum("bsd,sf->bdf", h, w1) + b1
    u = _gelu(u)
    y = torch.einsum("bdf,fs->bds", u, w2) + b2
    return (lambda x, *d: x.permute(*d))(y, 0, 2, 1)
```

```python
import sys, struct

def f32(x):
    return struct.unpack('<I', struct.pack('<f', x))[0]

S, D, F = 2048, 448, 1792
HF_OFF = 0
HF_BYTES = 7 * 128 * 2048
UF_OFF = 2 * 1024 * 1024
UF_BYTES = 7 * 112 * 2048

out = []
def e(s=''):
    out.append(s)

HEADER = """; MLP-mixer token mixing: LN -> GEMM1(+bias,gelu) -> GEMM2(+bias), bf16
; @launch kernel=ln_kernel grid=(256,1,1) block=(512,1,1) lds=8704
; @launch kernel=g1_kernel grid=(200,1,1) block=(256,1,1) lds=114688
; @launch kernel=g2_kernel grid=(224,1,1) block=(256,1,1) lds=114688
.amdgcn_target "amdgcn-amd-amdhsa--gfx950"
.text
"""

def kd(name, vgpr, sgpr=64):
    acc = (vgpr + 3) // 4 * 4
    return f""".amdhsa_kernel {name}
  .amdhsa_next_free_vgpr {vgpr}
  .amdhsa_next_free_sgpr {sgpr}
  .amdhsa_accum_offset {acc}
  .amdhsa_group_segment_fixed_size 0
  .amdhsa_kernarg_size 64
  .amdhsa_user_sgpr_count 2
  .amdhsa_user_sgpr_kernarg_segment_ptr 1
  .amdhsa_system_sgpr_workgroup_id_x 1
  .amdhsa_float_denorm_mode_32 3
.end_amdhsa_kernel
"""

def kstart(name):
    e(f".globl {name}")
    e(".p2align 8")
    e(f".type {name},@function")
    e(f"{name}:")

def srd(d, lo, hi, nbytes, add=0):
    if add:
        e(f"  s_add_u32 s{d}, s{lo}, {add:#x}")
        e(f"  s_addc_u32 s{d+1}, s{hi}, 0")
    else:
        e(f"  s_mov_b32 s{d}, s{lo}")
        e(f"  s_mov_b32 s{d+1}, s{hi}")
    e(f"  s_mov_b32 s{d+2}, {nbytes:#x}")
    e(f"  s_mov_b32 s{d+3}, 0x20000")

def wave_allreduce(v, t):
    for r in (8, 4, 2, 1):
        e("  s_nop 1")
        e(f"  v_add_f32_dpp v{v}, v{v}, v{v} row_ror:{r} row_mask:0xf bank_mask:0xf")
    e(f"  v_mov_b32 v{t}, v{v}")
    e("  s_nop 1")
    e(f"  v_permlane16_swap_b32 v{v}, v{t}")
    e("  s_nop 1")
    e(f"  v_add_f32 v{v}, v{v}, v{t}")
    e(f"  v_mov_b32 v{t}, v{v}")
    e("  s_nop 1")
    e(f"  v_permlane32_swap_b32 v{v}, v{t}")
    e("  s_nop 1")
    e(f"  v_add_f32 v{v}, v{v}, v{t}")

def rbf16(v):
    e(f"  v_cvt_pk_bf16_f32 v{v}, v{v}, v{v}")
    e(f"  v_and_b32 v{v}, 0xffff0000, v{v}")

def gen_ln():
    kstart("ln_kernel")
    e("  s_cmp_ge_u32 s2, 256")
    e("  s_cbranch_scc1 L_ln_done")
    e("  s_load_dwordx2 s[4:5], s[0:1], 0")
    e("  s_load_dwordx2 s[6:7], s[0:1], 56")
    e("  v_and_b32 v1, 63, v0")
    e("  v_lshrrev_b32 v2, 6, v0")
    e("  s_nop 0")
    e("  v_readfirstlane_b32 s16, v2")
    e("  s_lshl_b32 s17, s2, 3")
    e("  s_add_u32 s17, s17, s16")
    e("  s_mul_i32 s17, s17, 896")
    e("  v_lshlrev_b32 v3, 4, v1")
    e("  v_cmp_gt_u32 vcc, 56, v1")
    e("  v_mov_b32 v4, 0x7fffffff")
    e("  s_nop 0")
    e("  v_cndmask_b32 v4, v4, v3, vcc")
    e("  s_waitcnt lgkmcnt(0)")
    srd(8, 4, 5, S * D * 2)
    srd(12, 6, 7, HF_BYTES, HF_OFF)
    e("  buffer_load_dwordx4 v[8:11], v4, s[8:11], s17 offen")
    e("  s_mul_i32 s18, s16, 1088")
    e("  v_add_u32 v5, s18, v3")
    e("  v_bfe_u32 v6, v1, 2, 2")
    e("  v_mul_u32_u24 v6, 1088, v6")
    e("  v_lshrrev_b32 v7, 4, v1")
    e("  v_lshlrev_b32 v7, 5, v7")
    e("  v_add_u32 v6, v6, v7")
    e("  v_and_b32 v7, 3, v1")
    e("  v_lshlrev_b32 v7, 3, v7")
    e("  v_add_u32 v6, v6, v7")
    e("  s_lshl_b32 s19, s16, 7")
    e("  v_add_u32 v6, s19, v6")
    e("  v_lshrrev_b32 v7, 5, v1")
    e("  v_lshlrev_b32 v7, 10, v7")
    e("  v_and_b32 v12, 31, v1")
    e("  v_lshlrev_b32 v12, 4, v12")
    e("  v_add_u32 v7, v7, v12")
    e("  s_lshl_b32 s20, s16, 18")
    e("  s_lshr_b32 s21, s2, 1")
    e("  s_lshl_b32 s21, s21, 11")
    e("  s_add_u32 s20, s20, s21")
    e("  s_and_b32 s21, s2, 1")
    e("  s_lshl_b32 s21, s21, 9")
    e("  s_add_u32 s20, s20, s21")
    e("  s_waitcnt vmcnt(0)")
    for i in range(4):
        e(f"  v_lshlrev_b32 v{16+2*i}, 16, v{8+i}")
        e(f"  v_and_b32 v{17+2*i}, 0xffff0000, v{8+i}")
    e("  v_add_f32 v24, v16, v17")
    e("  v_add_f32 v25, v18, v19")
    e("  v_add_f32 v26, v20, v21")
    e("  v_add_f32 v27, v22, v23")
    e("  v_add_f32 v24, v24, v25")
    e("  v_add_f32 v26, v26, v27")
    e("  v_add_f32 v24, v24, v26")
    wave_allreduce(24, 25)
    e(f"  v_mul_f32 v24, {f32(1.0/448):#x}, v24")
    e("  v_cndmask_b32 v26, 0, v24, vcc")
    for i in range(8):
        e(f"  v_sub_f32 v{32+i}, v{16+i}, v26")
    e("  v_mul_f32 v27, v32, v32")
    for i in range(1, 8):
        e(f"  v_fmac_f32 v27, v{32+i}, v{32+i}")
    wave_allreduce(27, 25)
    e(f"  v_mul_f32 v27, {f32(1.0/448):#x}, v27")
    rbf16(27)
    e(f"  v_add_f32 v27, {f32(1e-5):#x}, v27")
    rbf16(27)
    e("  v_sqrt_f32 v27, v27")
    e("  s_nop 0")
    rbf16(27)
    e("  v_rcp_f32 v27, v27")
    rbf16(24)
    for i in range(8):
        e(f"  v_sub_f32 v{32+i}, v{16+i}, v24")
    for i in range(4):
        e(f"  v_cvt_pk_bf16_f32 v{40+i}, v{32+2*i}, v{33+2*i}")
    for i in range(4):
        e(f"  v_lshlrev_b32 v{32+2*i}, 16, v{40+i}")
        e(f"  v_and_b32 v{33+2*i}, 0xffff0000, v{40+i}")
    for i in range(8):
        e(f"  v_mul_f32 v{32+i}, v{32+i}, v27")
    for i in range(4):
        e(f"  v_cvt_pk_bf16_f32 v{40+i}, v{32+2*i}, v{33+2*i}")
    e("  ds_write_b128 v5, v[40:43]")
    e("  s_waitcnt lgkmcnt(0)")
    e("  s_barrier")
    e("  s_cmp_ge_u32 s16, 7")
    e("  s_cbranch_scc1 L_ln_done")
    e("  ds_read_b64_tr_b16 v[44:45], v6")
    e(f"  ds_read_b64_tr_b16 v[46:47], v6 offset:{4*1088}")
    e("  s_waitcnt lgkmcnt(0)")
    e("  buffer_store_dwordx4 v[44:47], v7, s[12:15], s20 offen")
    e("L_ln_done:")
    e("  s_endpgm")

R = 7
RING = R * 4096

def gen_gemm(which):
    g1 = which == 1
    name = "g1_kernel" if g1 else "g2_kernel"
    L = "L_g1" if g1 else "L_g2"
    NU = 16 if g1 else 14
    pitch = F * 2 if g1 else S * 2
    wbytes = S * F * 2
    xtile_stride = (128 if g1 else 112) * 2048
    kstart(name)
    if g1:
        e("  s_cmp_ge_u32 s2, 200")
        e(f"  s_cbranch_scc1 {L}_done")
        e("  s_and_b32 s16, s2, 7")
        e("  s_lshr_b32 s17, s2, 3")
        e("  s_mul_i32 s16, s16, 25")
        e("  s_add_u32 s16, s16, s17")
        e("  s_cmp_ge_u32 s16, 196")
        e(f"  s_cbranch_scc1 {L}_done")
    else:
        e("  s_cmp_ge_u32 s2, 224")
        e(f"  s_cbranch_scc1 {L}_done")
        e("  s_and_b32 s16, s2, 7")
        e("  s_lshr_b32 s17, s2, 3")
        e("  s_mul_i32 s16, s16, 28")
        e("  s_add_u32 s16, s16, s17")
    e("  s_load_dwordx4 s[4:7], s[0:1], %d" % (8 if g1 else 24))
    e("  s_load_dwordx2 s[8:9], s[0:1], 56")
    e("  s_load_dwordx2 s[10:11], s[0:1], 40")
    e("  s_mul_i32 s17, s16, 9363")
    e("  s_lshr_b32 s17, s17, 16")
    e("  s_mul_i32 s18, s17, 7")
    e("  s_sub_u32 s18, s16, s18")
    e("  v_and_b32 v1, 63, v0")
    e("  v_lshrrev_b32 v2, 6, v0")
    e("  s_nop 0")
    e("  v_readfirstlane_b32 s19, v2")
    e("  s_lshr_b32 s20, s19, 1")
    e("  s_and_b32 s21, s19, 1")
    e("  v_lshrrev_b32 v2, 3, v1")
    e(f"  v_mul_u32_u24 v4, {pitch}, v2")
    e("  v_bfe_u32 v2, v1, 4, 1")
    e("  v_lshlrev_b32 v2, 2, v2")
    e("  v_and_b32 v3, 7, v1")
    e("  v_xor_b32 v3, v3, v2")
    e("  v_lshlrev_b32 v3, 4, v3")
    e("  v_add_u32 v4, v4, v3")
    for i in range(1, 4):
        e(f"  v_add_u32 v{4+i}, {i*(8*pitch-1024)}, v4")
    e("  v_lshlrev_b32 v10, 4, v1")
    e("  s_lshl_b32 s22, s21, 10")
    e("  v_add_u32 v8, s22, v10")
    e("  s_xor_b32 s22, s22, 1024")
    e("  v_add_u32 v9, s22, v10")
    e(f"  s_mul_i32 s23, s19, {RING}")
    e("  v_bfe_u32 v2, v1, 2, 2")
    e("  v_lshrrev_b32 v3, 5, v1")
    e(f"  v_lshlrev_b32 v3, {3 if g1 else 2}, v3")
    e("  v_add_u32 v3, v3, v2")
    e("  v_lshlrev_b32 v11, 7, v3")
    e("  v_bfe_u32 v3, v1, 4, 1")
    e("  v_lshlrev_b32 v3, 5, v3")
    e("  v_add_u32 v11, v11, v3")
    e("  v_and_b32 v3, 3, v1")
    e("  v_lshlrev_b32 v3, 3, v3")
    e("  v_add_u32 v11, v11, v3")
    e("  v_lshrrev_b32 v2, 1, v2")
    e("  v_xor_b32 v2, s20, v2")
    e("  v_lshlrev_b32 v2, 6, v2")
    e("  v_add_u32 v11, v11, v2")
    e("  v_add_u32 v11, s23, v11")
    e("  v_xor_b32 v12, 64, v11")
    e("  s_waitcnt lgkmcnt(0)")
    srd(24, 4, 5, wbytes)
    if g1:
        srd(28, 8, 9, HF_BYTES, HF_OFF)
        srd(32, 8, 9, UF_BYTES, UF_OFF)
        srd(36, 6, 7, F * 2)
    else:
        srd(28, 8, 9, UF_BYTES, UF_OFF)
        srd(32, 10, 11, S * D * 2)
        srd(36, 6, 7, S * 2)
    e(f"  s_mul_i32 s40, s19, {NU*32*pitch}")
    e("  s_lshl_b32 s42, s17, 7")
    e("  s_add_u32 s40, s40, s42")
    e(f"  s_mul_i32 s41, s18, {xtile_stride}")
    e(f"  s_mul_i32 s42, s19, {NU*4096}")
    e("  s_add_u32 s41, s41, s42")
    ACC = 16
    WB = 80
    XR = 112
    BI = 224
    if g1:
        e("  v_lshrrev_b32 v2, 5, v1")
        e("  v_lshlrev_b32 v2, 3, v2")
        e("  s_lshl_b32 s42, s17, 7")
        e("  s_lshl_b32 s43, s20, 6")
        e("  s_add_u32 s42, s42, s43")
        for g in range(4):
            e(f"  buffer_load_dwordx2 v[{BI+2*g}:{BI+2*g+1}], v2, s[36:39], s42 offen offset:{16*g}")
    else:
        e("  v_and_b32 v2, 31, v1")
        e("  v_lshlrev_b32 v2, 1, v2")
        e("  s_lshl_b32 s42, s17, 7")
        e("  s_lshl_b32 s43, s20, 6")
        e("  s_add_u32 s42, s42, s43")
        e(f"  buffer_load_ushort v{BI}, v2, s[36:39], s42 offen")

    def issue(u):
        slot = u % R
        e(f"  s_add_u32 m0, s23, {slot*4096}")
        e("  s_nop 0")
        for i in range(4):
            e(f"  buffer_load_dwordx4 v{4+i}, s[24:27], s40 offen offset:{i*1024} lds")
        x = XR + slot * 16
        for t in range(2):
            for b in range(2):
                r0 = x + (t * 2 + b) * 4
                e(f"  buffer_load_dwordx4 v[{r0}:{r0+3}], v{8+b}, s[28:31], s41 offen offset:{t*2048}")
        e(f"  s_add_u32 s40, s40, {32*pitch}")
        e(f"  s_add_u32 s41, s41, 4096")

    def trread(u):
        slot = u % R
        wb = WB + (u & 1) * 16
        qoff = 512 if g1 else 1024
        for t in range(2):
            for b in range(2):
                for q in range(2):
                    r0 = wb + (t * 2 + b) * 4 + q * 2
                    e(f"  ds_read_b64_tr_b16 v[{r0}:{r0+1}], v{11+b} offset:{slot*4096 + t*2048 + q*qoff}")

    for u in range(R):
        issue(u)
    for i in range(64):
        e(f"  v_mov_b32 v{ACC+i}, 0")
    issued = R
    e(f"  s_waitcnt vmcnt({8*(R-1)})")
    trread(0)
    for u in range(NU):
        if u + 1 < NU:
            outstanding_units = issued - (u + 2)
            e(f"  s_waitcnt vmcnt({8*outstanding_units}) lgkmcnt(0)")
            trread(u + 1)
        else:
            e("  s_waitcnt lgkmcnt(0)")
        slot = u % R
        wb = WB + (u & 1) * 16
        x = XR + slot * 16
        for t in range(2):
            for i in range(2):
                for j in range(2):
                    a = ACC + (2 * i + j) * 16
                    wr = wb + (t * 2 + i) * 4
                    xr = x + (t * 2 + j) * 4
                    if g1:
                        e(f"  v_mfma_f32_32x32x16_bf16 v[{a}:{a+15}], v[{wr}:{wr+3}], v[{xr}:{xr+3}], v[{a}:{a+15}]")
                    else:
                        e(f"  v_mfma_f32_32x32x16_bf16 v[{a}:{a+15}], v[{xr}:{xr+3}], v[{wr}:{wr+3}], v[{a}:{a+15}]")
        if issued < NU:
            issue(issued)
            issued += 1
    e("  v_add_u32 v13, s23, v10")
    e("  s_nop 15")
    for jp in range(1, 4):
        for g in range(4):
            a = ACC + jp * 16 + g * 4
            e(f"  ds_write_b128 v13, v[{a}:{a+3}] offset:{(jp-1)*4096 + g*1024}")
    for jp in range(1, 4):
        e(f"  s_xor_b32 s42, s19, {jp}")
        e(f"  s_mul_i32 s42, s42, {RING}")
        e(f"  v_add_u32 v{4+jp}, s42, v10")
    e("  s_waitcnt lgkmcnt(0)")
    e("  s_barrier")
    P = 112
    for jp in range(1, 4):
        for g in range(4):
            r0 = P + (jp - 1) * 16 + g * 4
            e(f"  ds_read_b128 v[{r0}:{r0+3}], v{4+jp} offset:{(jp-1)*4096 + g*1024}")
    for jp in range(1, 4):
        e(f"  s_waitcnt lgkmcnt({4*(3-jp)})")
        for i in range(16):
            e(f"  v_add_f32 v{ACC+i}, v{ACC+i}, v{P+(jp-1)*16+i}")
    T = 80
    if g1:
        c = 0.7978845608028654
        log2e = 1.4426950408889634
        k0 = -2 * c * log2e
        k1 = k0 * 0.044715
        e(f"  s_mov_b32 s44, {f32(k1):#x}")
        e(f"  v_mov_b32 v14, {f32(k0):#x}")
        for i in range(8):
            e(f"  v_cvt_pk_bf16_f32 v{T+i}, v{ACC+2*i}, v{ACC+2*i+1}")
        for i in range(8):
            e(f"  v_lshlrev_b32 v{ACC+2*i}, 16, v{T+i}")
            e(f"  v_and_b32 v{ACC+2*i+1}, 0xffff0000, v{T+i}")
            e(f"  v_lshlrev_b32 v{P+2*i}, 16, v{BI+i}")
            e(f"  v_and_b32 v{P+2*i+1}, 0xffff0000, v{BI+i}")
        for i in range(16):
            e(f"  v_add_f32 v{ACC+i}, v{ACC+i}, v{P+i}")
        for i in range(8):
            e(f"  v_cvt_pk_bf16_f32 v{T+i}, v{ACC+2*i}, v{ACC+2*i+1}")
        for i in range(8):
            e(f"  v_lshlrev_b32 v{ACC+2*i}, 16, v{T+i}")
            e(f"  v_and_b32 v{ACC+2*i+1}, 0xffff0000, v{T+i}")
        for i in range(16):
            e(f"  v_mul_f32 v{P+i}, v{ACC+i}, v{ACC+i}")
        for i in range(16):
            e(f"  v_fma_f32 v{P+i}, v{P+i}, s44, v14")
        for i in range(16):
            e(f"  v_mul_f32 v{P+i}, v{P+i}, v{ACC+i}")
        for i in range(16):
            e(f"  v_exp_f32 v{P+i}, v{P+i}")
        for i in range(16):
            e(f"  v_add_f32 v{P+i}, 1.0, v{P+i}")
        for i in range(16):
            e(f"  v_rcp_f32 v{P+i}, v{P+i}")
        for i in range(16):
            e(f"  v_mul_f32 v{ACC+i}, v{ACC+i}, v{P+i}")
        for i in range(8):
            e(f"  v_cvt_pk_bf16_f32 v{T+i}, v{ACC+2*i}, v{ACC+2*i+1}")
        e(f"  s_mul_i32 s42, s18, {112*2048}")
        e("  s_lshl_b32 s43, s17, 13")
        e("  s_add_u32 s42, s42, s43")
        e("  s_lshl_b32 s43, s20, 12")
        e("  s_add_u32 s42, s42, s43")
        for t in range(2):
            e(f"  buffer_store_dwordx4 v[{T+4*t}:{T+4*t+3}], v8, s[32:35], s42 offen offset:{t*2048}")
    else:
        e(f"  v_lshlrev_b32 v14, 16, v{BI}")
        for i in range(8):
            e(f"  v_cvt_pk_bf16_f32 v{T+i}, v{ACC+2*i}, v{ACC+2*i+1}")
        for i in range(8):
            e(f"  v_lshlrev_b32 v{ACC+2*i}, 16, v{T+i}")
            e(f"  v_and_b32 v{ACC+2*i+1}, 0xffff0000, v{T+i}")
        for i in range(16):
            e(f"  v_add_f32 v{ACC+i}, v{ACC+i}, v14")
        for i in range(8):
            e(f"  v_cvt_pk_bf16_f32 v{T+i}, v{ACC+2*i}, v{ACC+2*i+1}")
        e("  v_and_b32 v2, 31, v1")
        e("  v_mul_u32_u24 v2, 896, v2")
        e("  v_lshrrev_b32 v3, 5, v1")
        e("  v_lshlrev_b32 v3, 4, v3")
        e("  v_add_u32 v2, v2, v3")
        e("  s_lshl_b32 s42, s17, 6")
        e("  s_lshl_b32 s43, s20, 5")
        e("  s_add_u32 s42, s42, s43")
        e("  s_mul_i32 s42, s42, 896")
        e("  s_lshl_b32 s43, s18, 7")
        e("  s_add_u32 s42, s42, s43")
        e("  s_lshl_b32 s43, s21, 6")
        e("  s_add_u32 s42, s42, s43")
        for p in range(2):
            e(f"  v_permlane32_swap_b32 v{T+4*p}, v{T+4*p+2}")
            e(f"  v_permlane32_swap_b32 v{T+4*p+1}, v{T+4*p+3}")
        e("  s_nop 1")
        for p in range(2):
            e(f"  buffer_store_dwordx4 v[{T+4*p}:{T+4*p+3}], v2, s[32:35], s42 offen offset:{32*p}")
    e(f"{L}_done:")
    e("  s_endpgm")

e(HEADER)
gen_ln()
gen_gemm(1)
gen_gemm(2)
e('.section .rodata,"a"')
e(".p2align 6")
e(kd("ln_kernel", 48))
e(".p2align 6")
e(kd("g1_kernel", 232))
e(".p2align 6")
e(kd("g2_kernel", 232))
open(sys.argv[1], "w").write("\n".join(out) + "\n")
```

```python
import sys
src = open(sys.argv[1]).read()
K = int(sys.argv[3]); useMin = len(sys.argv) > 4 and sys.argv[4] == 'min'
NAME = "standalone__mixer_token_mlp__prompt_kernel"
lines = src.split('\n')
li = [i for i, l in enumerate(lines) if l.startswith('; @launch')][0]
main = lines[li].replace('; @launch ', f'; @launch kernel={NAME} ')
lines[li:li+1] = [main, "; @launch kernel=probe_kernel grid=(1,1,1) block=(64,1,1) lds=0"]
body = []
for g in range(4):
    for w in range(4):
        off = g * 64 * 1024 + w * 128
        body.append(f"""  s_mov_b32 s15, {off}
  buffer_load_dword v2, v1, s[16:19], s15 offen
  buffer_load_dword v3, v1, s[16:19], s15 offen offset:{8*K}
  buffer_load_dword v4, v1, s[16:19], s15 offen offset:112
  s_waitcnt vmcnt(0)
  v_sub_u32 v2, s8, v2
  v_sub_u32 v3, s8, v3
  v_max_u32 v10, v10, v2
  v_cmp_{'le' if K in (0,1,2,3,4,13) else 'eq'}_u32 vcc, {0 if K in (0,1,2,3,4,13) else 3}, v4
  s_nop 1
  v_cndmask_b32 v3, v12, v3, vcc
  v_{'max' if useMin else 'min'}_u32 v11, v11, v3""")
k = f""".globl probe_kernel
.p2align 8
.type probe_kernel,@function
probe_kernel:
  s_cmp_ge_u32 s2, 1
  s_cbranch_scc1 L_pr_done
  s_memrealtime s[8:9]
  s_load_dwordx2 s[4:5], s[0:1], 56
  s_waitcnt lgkmcnt(0)
  s_add_u32 s16, s4, {128 << 20:#x}
  s_addc_u32 s17, s5, 0
  s_mov_b32 s18, 0x40000
  s_mov_b32 s19, 0x20000
  v_lshlrev_b32 v1, 10, v0
  v_mov_b32 v10, 0
  v_mov_b32 v11, {0 if useMin else -1}
  v_mov_b32 v12, {0 if useMin else -1}
""" + "\n".join(body) + f"""
  s_mov_b32 s20, 0
  s_mov_b32 s21, 0
  s_mov_b32 s22, {0 if useMin else -1}
L_pr_red:
  s_nop 3
  v_readlane_b32 s23, v10, s20
  v_readlane_b32 s24, v11, s20
  s_max_u32 s21, s21, s23
  s_{'max' if useMin else 'min'}_u32 s22, s22, s24
  s_add_u32 s20, s20, 1
  s_cmp_lt_u32 s20, 64
  s_cbranch_scc1 L_pr_red
  s_sub_u32 s11, s21, s22
  s_lshl_b32 s11, s11, 3
  s_min_u32 s11, s11, 40000
  s_add_u32 s11, s11, 2000
L_pr_loop:
  s_memrealtime s[12:13]
  s_waitcnt lgkmcnt(0)
  s_sub_u32 s14, s12, s8
  s_cmp_lt_u32 s14, s11
  s_cbranch_scc1 L_pr_loop
L_pr_done:
  s_endpgm
"""
s = '\n'.join(lines)
s = s.replace('.section .rodata,"a"', k + '.section .rodata,"a"', 1)
s += """.p2align 6
.amdhsa_kernel probe_kernel
  .amdhsa_next_free_vgpr 16
  .amdhsa_next_free_sgpr 32
  .amdhsa_accum_offset 16
  .amdhsa_group_segment_fixed_size 0
  .amdhsa_kernarg_size 64
  .amdhsa_user_sgpr_count 2
  .amdhsa_user_sgpr_kernarg_segment_ptr 1
  .amdhsa_system_sgpr_workgroup_id_x 1
.end_amdhsa_kernel
"""
open(sys.argv[2], 'w').write(s)
```

```python
import sys, re
src = open(sys.argv[1]).read()
mode = sys.argv[3]
NAME = "standalone__mixer_token_mlp__prompt_kernel"
lines = src.split('\n')
li = [i for i, l in enumerate(lines) if l.startswith('; @launch')][0]
main = lines[li].replace('; @launch ', f'; @launch kernel={NAME} ')
pr = "; @launch kernel=probe_kernel grid=(1,1,1) block=(64,1,1) lds=0"
mk = "; @launch kernel=mark_kernel grid=(1,1,1) block=(64,1,1) lds=0"
if mode == 'd': mk = "; @launch kernel=mark_kernel grid=(256,1,1) block=(256,1,1) lds=163840"
if mode == 'c':
    s = src.replace("L_done:\n  s_endpgm", """  s_cmp_lg_u32 s2, 0
  s_cbranch_scc1 L_done
L_lg:
  s_memrealtime s[74:75]
  s_waitcnt lgkmcnt(0)
  s_sub_u32 s66, s74, s72
  s_cmp_lt_u32 s66, 6000
  s_cbranch_scc1 L_lg
L_done:
  s_endpgm""")
    open(sys.argv[2], 'w').write(s); sys.exit()
off = (128 << 20) + (0 if mode == 'a' else 0x80000)
lines[li:li+1] = [main, pr] if mode == 'a' else [mk, main, pr]
k = f""".globl probe_kernel
.p2align 8
.type probe_kernel,@function
probe_kernel:
  s_cmp_ge_u32 s2, 1
  s_cbranch_scc1 L_pr_done
  s_load_dwordx2 s[4:5], s[0:1], 56
  s_waitcnt lgkmcnt(0)
  s_add_u32 s4, s4, {off:#x}
  s_addc_u32 s5, s5, 0
  s_load_dword s10, s[4:5], 0
  s_waitcnt lgkmcnt(0)
L_pr_loop:
  s_memrealtime s[12:13]
  s_waitcnt lgkmcnt(0)
  s_sub_u32 s14, s12, s10
  s_cmp_lt_u32 s14, 6000
  s_cbranch_scc1 L_pr_loop
L_pr_done:
  s_endpgm
.globl mark_kernel
.p2align 8
.type mark_kernel,@function
mark_kernel:
  s_memrealtime s[12:13]
  s_cmp_ge_u32 s2, 1
  s_cbranch_scc1 L_mk_done
  s_load_dwordx2 s[4:5], s[0:1], 56
  s_waitcnt lgkmcnt(0)
  s_add_u32 s8, s4, {(128 << 20) + 0x80000:#x}
  s_addc_u32 s9, s5, 0
  s_mov_b32 s10, 64
  s_mov_b32 s11, 0x20000
  v_mov_b32 v1, s12
  v_mov_b32 v2, 0
  s_mov_b64 exec, 1
  buffer_store_dword v1, v2, s[8:11], 0 offen
L_mk_done:
  s_endpgm
"""
s = '\n'.join(lines)
s = s.replace('.section .rodata,"a"', k + '.section .rodata,"a"', 1)
for n in ('probe_kernel', 'mark_kernel'):
    s += f""".p2align 6
.amdhsa_kernel {n}
  .amdhsa_next_free_vgpr 8
  .amdhsa_next_free_sgpr 16
  .amdhsa_accum_offset 8
  .amdhsa_group_segment_fixed_size 0
  .amdhsa_kernarg_size 64
  .amdhsa_user_sgpr_count 2
  .amdhsa_user_sgpr_kernarg_segment_ptr 1
  .amdhsa_system_sgpr_workgroup_id_x 1
.end_amdhsa_kernel
"""
open(sys.argv[2], 'w').write(s)
```

```python
import sys
src = open(sys.argv[1]).read()
K = int(sys.argv[3]); useMin = len(sys.argv) > 4 and sys.argv[4] == 'min'
NAME = "standalone__mixer_token_mlp__prompt_kernel"
lines = src.split('\n')
li = [i for i, l in enumerate(lines) if l.startswith('; @launch')][0]
main = lines[li].replace('; @launch ', f'; @launch kernel={NAME} ')
lines[li:li+1] = [main, "; @launch kernel=probe_kernel grid=(1,1,1) block=(64,1,1) lds=0"]
body = []
for g in range(4):
    for w in range(4):
        off = g * 64 * 1024 + w * 128
        body.append(f"""  s_mov_b32 s15, {off}
  buffer_load_dword v2, v1, s[16:19], s15 offen
  buffer_load_dword v3, v1, s[16:19], s15 offen offset:{8*K}
  buffer_load_dword v4, v1, s[16:19], s15 offen offset:112
  s_waitcnt vmcnt(0)
  v_sub_u32 v2, s8, v2
  v_sub_u32 v3, s8, v3
  v_max_u32 v10, v10, v2
  v_cmp_{'le' if K in (0,1,2,3,4,13) else 'eq'}_u32 vcc, {0 if K in (0,1,2,3,4,13) else 3}, v4
  s_nop 1
  v_cndmask_b32 v3, v12, v3, vcc
  v_{'max' if useMin else 'min'}_u32 v11, v11, v3""")
k = f""".globl probe_kernel
.p2align 8
.type probe_kernel,@function
probe_kernel:
  s_cmp_ge_u32 s2, 1
  s_cbranch_scc1 L_pr_done
  s_memrealtime s[8:9]
  s_load_dwordx2 s[4:5], s[0:1], 56
  s_waitcnt lgkmcnt(0)
  s_add_u32 s16, s4, {128 << 20:#x}
  s_addc_u32 s17, s5, 0
  s_mov_b32 s18, 0x40000
  s_mov_b32 s19, 0x20000
  v_lshlrev_b32 v1, 10, v0
  v_mov_b32 v10, 0
  v_mov_b32 v11, {0 if useMin else -1}
  v_mov_b32 v12, {0 if useMin else -1}
""" + "\n".join(body) + f"""
  s_mov_b32 s20, 0
  s_mov_b32 s21, 0
  s_mov_b32 s22, {0 if useMin else -1}
L_pr_red:
  s_nop 3
  v_readlane_b32 s23, v10, s20
  v_readlane_b32 s24, v11, s20
  s_max_u32 s21, s21, s23
  s_{'max' if useMin else 'min'}_u32 s22, s22, s24
  s_add_u32 s20, s20, 1
  s_cmp_lt_u32 s20, 64
  s_cbranch_scc1 L_pr_red
  s_sub_u32 s11, s21, s22
  s_lshl_b32 s11, s11, 3
  s_min_u32 s11, s11, 40000
  s_add_u32 s11, s11, 4000
  s_min_u32 s21, s21, 4000
  s_sub_u32 s11, s11, s21
  s_min_u32 s11, s11, 44000
L_pr_loop:
  s_memrealtime s[12:13]
  s_waitcnt lgkmcnt(0)
  s_sub_u32 s14, s12, s8
  s_cmp_lt_u32 s14, s11
  s_cbranch_scc1 L_pr_loop
L_pr_done:
  s_endpgm
"""
s = '\n'.join(lines)
s = s.replace('.section .rodata,"a"', k + '.section .rodata,"a"', 1)
s += """.p2align 6
.amdhsa_kernel probe_kernel
  .amdhsa_next_free_vgpr 16
  .amdhsa_next_free_sgpr 32
  .amdhsa_accum_offset 16
  .amdhsa_group_segment_fixed_size 0
  .amdhsa_kernarg_size 64
  .amdhsa_user_sgpr_count 2
  .amdhsa_user_sgpr_kernarg_segment_ptr 1
  .amdhsa_system_sgpr_workgroup_id_x 1
.end_amdhsa_kernel
"""
open(sys.argv[2], 'w').write(s)
```

```python
import sys
src = open(sys.argv[1]).read()
K = int(sys.argv[3]); useMin = len(sys.argv) > 4 and sys.argv[4] == 'min'
FM = int(sys.argv[5]) if len(sys.argv) > 5 else 0; FV = int(sys.argv[6]) if len(sys.argv) > 6 else 0
NAME = "standalone__mixer_token_mlp__prompt_kernel"
lines = src.split('\n')
li = [i for i, l in enumerate(lines) if l.startswith('; @launch')][0]
main = lines[li].replace('; @launch ', f'; @launch kernel={NAME} ')
lines[li:li+1] = [main, "; @launch kernel=probe_kernel grid=(1,1,1) block=(64,1,1) lds=0"]
body = []
for g in range(4):
    for w in range(4):
        off = g * 64 * 1024 + w * 128
        body.append(f"""  s_mov_b32 s15, {off}
  buffer_load_dword v2, v1, s[16:19], s15 offen
  buffer_load_dword v3, v1, s[16:19], s15 offen offset:{8*K}
  buffer_load_dword v4, v1, s[16:19], s15 offen offset:112
  s_waitcnt vmcnt(0)
  v_sub_u32 v2, s8, v2
  v_sub_u32 v3, s8, v3
  v_max_u32 v10, v10, v2
  v_cmp_{'le' if K in (0,1,2,3,4,13) else 'eq'}_u32 vcc, {0 if K in (0,1,2,3,4,13) else 3}, v4
  s_nop 1
  v_cndmask_b32 v3, v12, v3, vcc
  v_{'max' if useMin else 'min'}_u32 v11, v11, v3""")
k = f""".globl probe_kernel
.p2align 8
.type probe_kernel,@function
probe_kernel:
  s_cmp_ge_u32 s2, 1
  s_cbranch_scc1 L_pr_done
  s_memrealtime s[8:9]
  s_load_dwordx2 s[4:5], s[0:1], 56
  s_waitcnt lgkmcnt(0)
  s_add_u32 s16, s4, {128 << 20:#x}
  s_addc_u32 s17, s5, 0
  s_mov_b32 s18, 0x40000
  s_mov_b32 s19, 0x20000
  v_lshlrev_b32 v1, 10, v0
  v_mov_b32 v10, 0
  v_mov_b32 v11, {0 if useMin else -1}
  v_mov_b32 v12, {0 if useMin else -1}
""" + "\n".join(body) + f"""
  v_and_b32 v5, {FM}, v0
  v_cmp_eq_u32 vcc, {FV}, v5
  s_nop 1
  v_cndmask_b32 v11, v12, v11, vcc
  s_mov_b32 s20, 0
  s_mov_b32 s21, 0
  s_mov_b32 s22, {0 if useMin else -1}
L_pr_red:
  s_nop 3
  v_readlane_b32 s23, v10, s20
  v_readlane_b32 s24, v11, s20
  s_max_u32 s21, s21, s23
  s_{'max' if useMin else 'min'}_u32 s22, s22, s24
  s_add_u32 s20, s20, 1
  s_cmp_lt_u32 s20, 64
  s_cbranch_scc1 L_pr_red
  s_sub_u32 s11, s21, s22
  s_lshl_b32 s11, s11, 3
  s_min_u32 s11, s11, 40000
  s_add_u32 s11, s11, 4000
  s_min_u32 s21, s21, 4000
  s_sub_u32 s11, s11, s21
  s_min_u32 s11, s11, 44000
L_pr_loop:
  s_memrealtime s[12:13]
  s_waitcnt lgkmcnt(0)
  s_sub_u32 s14, s12, s8
  s_cmp_lt_u32 s14, s11
  s_cbranch_scc1 L_pr_loop
L_pr_done:
  s_endpgm
"""
s = '\n'.join(lines)
s = s.replace('.section .rodata,"a"', k + '.section .rodata,"a"', 1)
s += """.p2align 6
.amdhsa_kernel probe_kernel
  .amdhsa_next_free_vgpr 16
  .amdhsa_next_free_sgpr 32
  .amdhsa_accum_offset 16
  .amdhsa_group_segment_fixed_size 0
  .amdhsa_kernarg_size 64
  .amdhsa_user_sgpr_count 2
  .amdhsa_user_sgpr_kernarg_segment_ptr 1
  .amdhsa_system_sgpr_workgroup_id_x 1
.end_amdhsa_kernel
"""
open(sys.argv[2], 'w').write(s)
```

```python
import sys
src = open(sys.argv[1]).read()
K = int(sys.argv[3]); useMin = len(sys.argv) > 4 and sys.argv[4] == 'min'
FM = int(sys.argv[5]) if len(sys.argv) > 5 else 0; FV = int(sys.argv[6]) if len(sys.argv) > 6 else 0
NAME = "standalone__mixer_token_mlp__prompt_kernel"
lines = src.split('\n')
li = [i for i, l in enumerate(lines) if l.startswith('; @launch')][0]
main = lines[li].replace('; @launch ', f'; @launch kernel={NAME} ')
lines[li:li+1] = [main, "; @launch kernel=probe_kernel grid=(1,1,1) block=(64,1,1) lds=0"]
body = []
for g in range(4):
    for w in range(4):
        off = g * 64 * 1024 + w * 128
        body.append(f"""  s_mov_b32 s15, {off}
  buffer_load_dword v2, v1, s[16:19], s15 offen
  buffer_load_dword v3, v1, s[16:19], s15 offen offset:{8*K}
  buffer_load_dword v4, v1, s[16:19], s15 offen offset:112
  s_waitcnt vmcnt(0)
  v_sub_u32 v2, s8, v2
  v_sub_u32 v3, s8, v3
  v_max_u32 v10, v10, v2
  v_cmp_{'le' if K in (0,13) else 'eq'}_u32 vcc, {0 if K in (0,13) else 3}, v4
  s_nop 1
  v_cndmask_b32 v3, v12, v3, vcc
  v_{'max' if useMin else 'min'}_u32 v11, v11, v3""")
k = f""".globl probe_kernel
.p2align 8
.type probe_kernel,@function
probe_kernel:
  s_cmp_ge_u32 s2, 1
  s_cbranch_scc1 L_pr_done
  s_memrealtime s[8:9]
  s_load_dwordx2 s[4:5], s[0:1], 56
  s_waitcnt lgkmcnt(0)
  s_add_u32 s16, s4, {128 << 20:#x}
  s_addc_u32 s17, s5, 0
  s_mov_b32 s18, 0x40000
  s_mov_b32 s19, 0x20000
  v_lshlrev_b32 v1, 10, v0
  v_mov_b32 v10, 0
  v_mov_b32 v11, {0 if useMin else -1}
  v_mov_b32 v12, {0 if useMin else -1}
""" + "\n".join(body) + f"""
  v_and_b32 v5, {FM}, v0
  v_cmp_eq_u32 vcc, {FV}, v5
  s_nop 1
  v_cndmask_b32 v11, v12, v11, vcc
  s_mov_b32 s20, 0
  s_mov_b32 s21, 0
  s_mov_b32 s22, {0 if useMin else -1}
L_pr_red:
  s_nop 3
  v_readlane_b32 s23, v10, s20
  v_readlane_b32 s24, v11, s20
  s_max_u32 s21, s21, s23
  s_{'max' if useMin else 'min'}_u32 s22, s22, s24
  s_add_u32 s20, s20, 1
  s_cmp_lt_u32 s20, 64
  s_cbranch_scc1 L_pr_red
  s_sub_u32 s11, s21, s22
  s_lshl_b32 s11, s11, 3
  s_min_u32 s11, s11, 40000
  s_add_u32 s11, s11, 4000
  s_min_u32 s21, s21, 4000
  s_sub_u32 s11, s11, s21
  s_min_u32 s11, s11, 44000
L_pr_loop:
  s_memrealtime s[12:13]
  s_waitcnt lgkmcnt(0)
  s_sub_u32 s14, s12, s8
  s_cmp_lt_u32 s14, s11
  s_cbranch_scc1 L_pr_loop
L_pr_done:
  s_endpgm
"""
s = '\n'.join(lines)
s = s.replace('.section .rodata,"a"', k + '.section .rodata,"a"', 1)
s += """.p2align 6
.amdhsa_kernel probe_kernel
  .amdhsa_next_free_vgpr 16
  .amdhsa_next_free_sgpr 32
  .amdhsa_accum_offset 16
  .amdhsa_group_segment_fixed_size 0
  .amdhsa_kernarg_size 64
  .amdhsa_user_sgpr_count 2
  .amdhsa_user_sgpr_kernarg_segment_ptr 1
  .amdhsa_system_sgpr_workgroup_id_x 1
.end_amdhsa_kernel
"""
open(sys.argv[2], 'w').write(s)
```
